```python
import torch

def _softmax(x, axis=-1):
    return torch.softmax(x, dim=axis)
def _gelu(x):
    return torch.nn.functional.gelu(x, approximate="tanh")
def _silu(x):
    return torch.nn.functional.silu(x)
def _sigmoid(x):
    return torch.sigmoid(x)
def _layernorm(x, axis=-1, eps=1e-5):
    m = x.mean(dim=axis, keepdim=True)
    v = x.var(dim=axis, keepdim=True, unbiased=False)
    return (x - m) / torch.sqrt(v + eps)
def _scatter_add(tgt, idx, src, axis=0):
    return tgt.clone().index_add_(axis, idx, src)
def _segment_sum(src, seg, n):
    out = torch.zeros((n,) + src.shape[1:], dtype=src.dtype)
    return out.index_add_(0, seg, src)
def _pad(x, pw):
    flat = tuple(v for pair in reversed(pw) for v in pair)
    return torch.nn.functional.pad(x, flat)

kernel_name = 'gated_mix__softmax_full_mha__geglu_ffn__prompt'

def setup_inputs():

    _w = (lambda a: (lambda t: t.to(torch.bfloat16) if t.is_floating_point() else t)(torch.as_tensor(a)))
    def _A_setup():
        B, S, D = 1, 2048, 512
        return {
            "x": _w((lambda *s: torch.randn(*s, dtype=torch.bfloat16) * 0.05)(B, S, D)),
            "wqkv": _w((lambda *s: torch.randn(*s, dtype=torch.bfloat16) * 0.8)(D, 3 * D)),
            "wo": _w((lambda *s: torch.randn(*s, dtype=torch.bfloat16) * 0.05)(D, D)),
        }
    _A_in = _A_setup()

    def _B_setup():
        B, S, D, F = 1, 2048, 512, 1376
        return {
            "x": _w((lambda *s: torch.randn(*s, dtype=torch.bfloat16) * 0.05)(B, S, D)),
            "w_gate": _w((lambda *s: torch.randn(*s, dtype=torch.bfloat16) * 0.1)(D, F)),
            "w_up": _w((lambda *s: torch.randn(*s, dtype=torch.bfloat16) * 0.1)(D, F)),
            "w_down": _w((lambda *s: torch.randn(*s, dtype=torch.bfloat16) * 0.1)(F, D)),
        }
    _B_in = _B_setup()

    return {
        "A_x": _A_in["x"],
        "A_wqkv": _A_in["wqkv"],
        "A_wo": _A_in["wo"],
        "B_x": _B_in["x"],
        "B_w_gate": _B_in["w_gate"],
        "B_w_up": _B_in["w_up"],
        "B_w_down": _B_in["w_down"],
        "gate_w": _w((lambda *s: torch.randn(*s, dtype=torch.bfloat16) * 0.05)(512) * 16.0),
    }

def reference(A_x, A_wqkv, A_wo, B_x, B_w_gate, B_w_up, B_w_down, gate_w):
    def _A_ref(x, wqkv, wo):
        B, S, D = x.shape
        H = 32; Dh = D // H
        qkv = (lambda x, *d: x.permute(*d))((x @ wqkv).reshape(B, S, 3, H, Dh), 2, 0, 3, 1, 4)
        q, k, v = qkv[0], qkv[1], qkv[2]
        scale = Dh ** -0.5
        scores = torch.einsum("bhqd,bhkd->bhqk", q, k) * scale
        p = _softmax(scores, axis=-1)
        o = torch.einsum("bhqk,bhkd->bhqd", p, v)
        return (lambda x, *d: x.permute(*d))(o, 0, 2, 1, 3).reshape(B, S, D) @ wo

    def _B_ref(x, w_gate, w_up, w_down):
        return (_gelu(x @ w_gate) * (x @ w_up)) @ w_down

    x = A_x
    g = _sigmoid((x * gate_w).sum(-1, keepdims=True))
    a = _A_ref(x, A_wqkv, A_wo)
    b = _B_ref(x, B_w_gate, B_w_up, B_w_down)
    return g * a + (1 - g) * b
```

```python
import sys, struct, math

NAME = "gated_mix__softmax_full_mha__geglu_ffn__prompt"

def f2u(x):
    return struct.unpack("<I", struct.pack("<f", x))[0]

class Cfg:
    prof = False
    kv_mode = "dma_sc1"
    force_fallback = False
    spin_max = 400000

class Asm:
    def __init__(self):
        self.lines = []
        self.vm = []
        self.lg = []
        self.uid = 0
    def e(self, s):
        self.lines.append("    " + s)
    def label(self, s):
        self.lines.append(s + ":")
    def c(self, s):
        self.lines.append("    ; " + s)
    def newlabel(self, p):
        self.uid += 1
        return "L_%s_%d" % (p, self.uid)
    def vmem(self, s, tag):
        self.e(s); self.vm.append(tag)
    def lds(self, s, tag):
        self.e(s); self.lg.append(tag)
    def _n(self, lst, tags):
        if isinstance(tags, str): tags = [tags]
        last = -1
        for i, t in enumerate(lst):
            if t in tags: last = i
        return last
    def wait(self, vm=None, lg=None):
        parts = []
        if vm is not None:
            if vm == "all":
                if self.vm: parts.append("vmcnt(0)")
                self.vm = []
            else:
                last = self._n(self.vm, vm)
                if last >= 0:
                    n = len(self.vm) - 1 - last
                    assert n <= 63
                    parts.append("vmcnt(%d)" % n)
                    self.vm = self.vm[last + 1:]
        if lg is not None:
            if lg == "all":
                if self.lg: parts.append("lgkmcnt(0)")
                self.lg = []
            else:
                last = self._n(self.lg, lg)
                if last >= 0:
                    n = len(self.lg) - 1 - last
                    n = min(n, 15)
                    parts.append("lgkmcnt(%d)" % n)
                    self.lg = self.lg[len(self.lg) - n:] if n else []
        if parts:
            self.e("s_waitcnt " + " ".join(parts))
    def text(self):
        return "\n".join(self.lines) + "\n"

WS_Q, WS_K, WS_V, WS_O, WS_H, WS_G = 0, 2 << 20, 4 << 20, 6 << 20, 8 << 20, 14 << 20
WS_PROF = 15 << 20
WS_SIZE = 16 << 20
HPITCH = 88
SLOT = 28672
UPOFF = 12320
LDS_K, LDS_V, LDS_R = 0, 65536, 131072
QSCALE = 0.25 * math.log2(math.e)
C1 = -2.0 * math.sqrt(2.0 / math.pi) * math.log2(math.e)
C2 = C1 * 0.044715

S_W = 3
SRD_X, SRD_WQ, SRD_GU, SRD_WD, SRD_WO, SRD_WS, SRD_OUT, SRD_DBG, SRD_GW = 4, 8, 12, 16, 20, 24, 28, 32, 36
S_VMASK = 40
S_ROWB, S_COLB, S_HEAD, S_QBLK, S_OROW, S_OCOL = 42, 43, 44, 45, 46, 47
S_KA = 48
S_XOFF, S_WQOFF, S_GUOFF = 70, 71, 72
S_MX, S_MWQ, S_MGU = 73, 74, 75
S_T0, S_T1, S_T2, S_T3 = 76, 77, 78, 79
S_KVG, S_KVL, S_WDG, S_WDL, S_HG, S_OG = 70, 71, 72, 73, 74, 75
S_SPIN = 80
S_PROF = 82

def srd(r): return "s[%d:%d]" % (r, r + 3)
def vr(a, n): return "v[%d:%d]" % (a, a + n - 1)
def ar(a, n): return "a[%d:%d]" % (a, a + n - 1)

def mk_srd(a, r, ptr, nbytes):
    a.e("s_mov_b32 s%d, s%d" % (r, ptr))
    a.e("s_mov_b32 s%d, s%d" % (r + 1, ptr + 1))
    a.e("s_mov_b32 s%d, 0x%x" % (r + 2, nbytes))
    a.e("s_mov_b32 s%d, 0x00020000" % (r + 3))

def stamp(a, cfg, i):
    if cfg.prof:
        a.e("s_memrealtime s[%d:%d]" % (S_PROF + 2 * i, S_PROF + 2 * i + 1))
        a.e("s_waitcnt lgkmcnt(0)")
        a.lg = []

def dma(a, vaddr, srdr, soff, mbase, mimm, tag, sc1=False):
    a.e("s_add_u32 m0, s%d, %d" % (mbase, mimm))
    a.e("s_nop 0")
    a.vmem("buffer_load_dwordx4 v%d, %s, s%d offen%s lds" % (vaddr, srd(srdr), soff, " sc1" if sc1 else ""), tag)

def flag_store(a, val):
    L = a.newlabel("fs")
    a.e("s_cmp_lg_u32 s%d, 0" % S_W)
    a.e("s_cbranch_scc1 %s" % L)
    a.e("v_mov_b32 v124, s2")
    a.e("v_mov_b32 v125, %d" % val)
    a.e("s_mov_b64 exec, 1")
    a.e("buffer_store_byte v125, v124, %s, 0 offen sc1" % srd(SRD_DBG))
    a.e("s_mov_b64 exec, -1")
    a.label(L)

def poll(a, cfg, bit, vt=124, subset=False):
    L = a.newlabel("pl"); Ld = a.newlabel("pd")
    m = bit * 0x01010101
    a.e("s_cmp_lg_u32 s%d, 0" % S_W)
    a.e("s_cbranch_scc1 %s" % Ld)
    a.e("s_mov_b32 s%d, %d" % (S_SPIN, cfg.spin_max))
    if subset:
        a.e("s_lshr_b32 s%d, s%d, 2" % (S_T0, S_OROW))
        a.e("s_lshl_b32 s%d, s%d, 5" % (S_T0, S_T0))
        a.e("v_and_b32 v%d, 7, v0" % (vt + 1))
        a.e("v_lshlrev_b32 v%d, 2, v%d" % (vt + 1, vt + 1))
        a.e("v_add_u32 v%d, s%d, v%d" % (vt + 1, S_T0, vt + 1))
    else:
        a.e("v_lshlrev_b32 v%d, 2, v0" % (vt + 1))
    a.label(L)
    a.e("buffer_load_dword v%d, v%d, %s, 0 offen sc1" % (vt, vt + 1, srd(SRD_DBG)))
    a.e("s_waitcnt vmcnt(0)")
    a.e("v_and_b32 v%d, 0x%x, v%d" % (vt, m, vt))
    a.e("v_cmp_ne_u32 vcc, 0x%x, v%d" % (m, vt))
    a.e("s_nop 4")
    a.e("s_cbranch_vccz %s" % Ld)
    a.e("s_sub_u32 s%d, s%d, 1" % (S_SPIN, S_SPIN))
    a.e("s_cmp_eq_u32 s%d, 0" % S_SPIN)
    a.e("s_cbranch_scc1 %s" % Ld)
    a.e("s_sleep 1")
    a.e("s_branch %s" % L)
    a.label(Ld)

V_XD0, V_XD1, V_WQ0, V_WQ1, V_GU0 = 2, 3, 4, 5, 6
V_XREL, V_XCUR, V_WQREL, V_GUREL, V_WCUR, V_VST = 9, 10, 14, 15, 16, 17
V_WF = 20
V_ACCA = 44
V_ACCB = 76

def prologue(a, cfg):
    a.e("s_cmp_ge_u32 s2, 256")
    a.e("s_cbranch_scc1 L_end")
    a.e("s_load_dwordx4 s[48:51], s[0:1], 0")
    a.e("s_load_dwordx4 s[52:55], s[0:1], 16")
    a.e("s_load_dwordx8 s[56:63], s[0:1], 32")
    a.e("s_load_dwordx4 s[64:67], s[0:1], 64")
    a.e("s_load_dwordx2 s[68:69], s[0:1], 80")
    if cfg.prof:
        a.e("s_memrealtime s[%d:%d]" % (S_PROF, S_PROF + 1))
    a.e("v_lshrrev_b32 v1, 6, v0")
    a.e("v_and_b32 v0, 63, v0")
    a.e("s_and_b32 s76, s2, 7")
    a.e("v_readfirstlane_b32 s3, v1")
    a.e("s_lshr_b32 s77, s2, 3")
    a.e("s_and_b32 s78, s76, 3")
    a.e("s_lshl_b32 s78, s78, 2")
    a.e("s_and_b32 s79, s77, 3")
    a.e("s_add_u32 s%d, s78, s79" % S_ROWB)
    a.e("s_lshr_b32 s78, s76, 2")
    a.e("s_lshl_b32 s78, s78, 3")
    a.e("s_lshr_b32 s%d, s77, 2" % S_QBLK)
    a.e("s_add_u32 s%d, s78, s%d" % (S_COLB, S_QBLK))
    a.e("s_lshl_b32 s78, s76, 2")
    a.e("s_add_u32 s%d, s78, s79" % S_HEAD)
    a.e("s_lshr_b32 s78, s76, 1")
    a.e("s_lshl_b32 s78, s78, 3")
    a.e("s_and_b32 s79, s77, 7")
    a.e("s_add_u32 s%d, s78, s79" % S_OROW)
    a.e("s_and_b32 s78, s76, 1")
    a.e("s_lshl_b32 s78, s78, 2")
    a.e("s_lshr_b32 s79, s77, 3")
    a.e("s_add_u32 s%d, s78, s79" % S_OCOL)
    a.e("v_lshrrev_b32 v2, 3, v0")
    a.e("v_lshlrev_b32 v2, 10, v2")
    a.e("v_lshrrev_b32 v3, 4, v0")
    a.e("v_xor_b32 v3, v3, v0")
    a.e("v_and_b32 v3, 7, v3")
    a.e("v_lshl_add_u32 v2, v3, 4, v2")
    a.e("v_xor_b32 v3, 64, v2")
    a.e("v_add_u32 v3, 0x2000, v3")
    a.e("s_lshl_b32 s%d, s%d, 17" % (S_XOFF, S_ROWB))
    a.e("s_lshl_b32 s78, s3, 14")
    a.e("s_add_u32 s%d, s%d, s78" % (S_XOFF, S_XOFF))
    a.e("s_lshl_b32 s%d, s3, 11" % S_MX)
    a.e("s_lshl_b32 s78, s3, 1")
    a.e("s_sub_u32 s78, s78, 4")
    a.e("s_cmp_lt_u32 s3, 4")
    a.e("s_cselect_b32 s78, s3, s78")
    a.e("s_lshl_b32 s%d, s78, 10" % S_MWQ)
    a.e("s_add_u32 s%d, s%d, 16384" % (S_MWQ, S_MWQ))
    a.e("s_lshl_b32 s78, s78, 6")
    a.e("s_mov_b32 s79, 3072")
    for i, r in enumerate((V_WQ0, V_WQ1)):
        a.e("v_add_u32 v10, s78, v0")
        if i: a.e("v_add_u32 v10, 64, v10")
        a.e("v_mul_u32_u24 v11, 43691, v10")
        a.e("v_lshrrev_b32 v11, 19, v11")
        a.e("v_mul_u32_u24 v12, 12, v11")
        a.e("v_sub_u32 v10, v10, v12")
        a.e("v_mul_u32_u24 v11, 3072, v11")
        a.e("v_lshl_add_u32 v%d, v10, 4, v11" % r)
    a.e("s_mul_i32 s%d, s%d, 192" % (S_WQOFF, S_COLB))
    a.e("s_waitcnt lgkmcnt(0)")
    mk_srd(a, SRD_X, 48, 2048 * 1024)
    mk_srd(a, SRD_WQ, 50, 512 * 3072)

def issue_chunk(a, i, ch):
    sb = (i % 5) * SLOT
    tag = "c%d" % i
    if i < 8:
        dma(a, V_XD0, SRD_X, S_XOFF, S_MX, sb, tag)
        dma(a, V_XD1, SRD_X, S_XOFF, S_MX, sb + 1024, tag)
        dma(a, V_WQ0, SRD_WQ, S_WQOFF, S_MWQ, sb, tag)
        if ch == 1:
            dma(a, V_WQ1, SRD_WQ, S_WQOFF, S_MWQ, sb + 1024, tag)
        a.e("s_add_u32 s%d, s%d, 128" % (S_XOFF, S_XOFF))
        a.e("s_add_u32 s%d, s%d, %d" % (S_WQOFF, S_WQOFF, 64 * 3072))
    else:
        for k in range(3):
            dma(a, V_GU0 + k, SRD_GU, S_GUOFF, S_MGU, sb + 1024 * k, tag)
        a.e("s_add_u32 s%d, s%d, %d" % (S_GUOFF, S_GUOFF, 64 * 2752))

def setup2(a, cfg):
    a.e("s_cmp_lt_u32 s3, 4")
    a.e("s_cselect_b32 s%d, s56, s58" % SRD_GU)
    a.e("s_cselect_b32 s%d, s57, s59" % (SRD_GU + 1))
    a.e("s_mov_b32 s%d, 0x%x" % (SRD_GU + 2, 512 * 2752))
    a.e("s_mov_b32 s%d, 0x00020000" % (SRD_GU + 3))
    mk_srd(a, SRD_WD, 60, 1376 * 1024)
    mk_srd(a, SRD_WO, 52, 512 * 1024)
    mk_srd(a, SRD_WS, 68, WS_SIZE)
    mk_srd(a, SRD_OUT, 64, 2048 * 1024)
    mk_srd(a, SRD_DBG, 66, 256)
    mk_srd(a, SRD_GW, 62, 1024)
    a.e("s_mov_b32 s%d, 0x0000ffff" % S_VMASK)
    a.e("s_mov_b32 s%d, 0x0000ffff" % (S_VMASK + 1))
    a.e("v_lshlrev_b32 v1, 4, v0")
    for k in range(3):
        a.e("v_add_u32 v10, %d, v0" % (64 * k))
        a.e("v_mul_u32_u24 v11, 43691, v10")
        a.e("v_lshrrev_b32 v11, 19, v11")
        a.e("v_mul_u32_u24 v12, 12, v11")
        a.e("v_sub_u32 v10, v10, v12")
        a.e("v_mul_u32_u24 v11, 2752, v11")
        a.e("v_lshl_add_u32 v%d, v10, 4, v11" % (V_GU0 + k))
    a.e("s_and_b32 s76, s3, 3")
    a.e("s_lshr_b32 s77, s3, 2")
    a.e("s_mul_i32 s78, s%d, 6" % S_COLB)
    a.e("s_min_u32 s78, s78, 80")
    a.e("s_lshl_b32 s78, s78, 5")
    a.e("s_mul_i32 s79, s76, %d" % (16 * 2752))
    a.e("s_add_u32 s%d, s78, s79" % S_GUOFF)
    a.e("s_mul_i32 s78, s77, %d" % UPOFF)
    a.e("s_mul_i32 s79, s76, 3072")
    a.e("s_add_u32 s%d, s78, s79" % S_MGU)
    a.e("v_and_b32 v10, 31, v0")
    a.e("v_lshlrev_b32 v10, 7, v10")
    a.e("v_lshrrev_b32 v11, 5, v0")
    a.e("v_lshrrev_b32 v12, 1, v0")
    a.e("v_and_b32 v12, 7, v12")
    a.e("v_xor_b32 v12, v12, v11")
    a.e("v_lshl_add_u32 v10, v12, 4, v10")
    a.e("s_lshl_b32 s78, s76, 12")
    a.e("v_add_u32 v%d, s78, v10" % V_XREL)
    a.e("v_bfe_u32 v12, v0, 2, 2")
    a.e("v_lshl_add_u32 v12, v11, 3, v12")
    a.e("v_mul_u32_u24 v12, 192, v12")
    a.e("v_and_b32 v13, 3, v0")
    a.e("v_lshl_add_u32 v12, v13, 3, v12")
    a.e("v_bfe_u32 v13, v0, 4, 1")
    a.e("v_lshl_add_u32 v10, v13, 5, v12")
    a.e("s_lshl_b32 s78, s77, 7")
    a.e("s_add_u32 s78, s78, 16384")
    a.e("v_add_u32 v%d, s78, v10" % V_WQREL)
    a.e("v_mul_u32_u24 v10, %d, v13" % UPOFF)
    a.e("v_add_u32 v10, v10, v12")
    a.e("s_mul_i32 s78, s77, 96")
    a.e("v_add_u32 v%d, s78, v10" % V_GUREL)
    a.e("v_lshlrev_b32 v10, 16, v13")
    a.e("v_lshl_add_u32 v10, v11, 8, v10")
    a.e("v_and_b32 v12, 15, v0")
    a.e("v_lshl_add_u32 v%d, v12, 4, v10" % V_VST)

def reads_step(a, g, ch):
    i, s = g // 4, g % 4
    buf = V_WF + 12 * (g % 2)
    tag = "r%d" % g
    if s == 0:
        sb = (i % 5) * SLOT
        if i < 8:
            a.e("v_add_u32 v%d, %d, v%d" % (V_XCUR, sb, V_XREL))
            for k in range(1, 4):
                a.e("v_xor_b32 v%d, %d, v%d" % (V_XCUR + k, 32 * k, V_XCUR))
            a.e("v_add_u32 v%d, %d, v%d" % (V_WCUR, sb, V_WQREL))
        else:
            a.e("v_add_u32 v%d, %d, v%d" % (V_WCUR, sb, V_GUREL))
    if i < 8:
        nt = 2 if ch == 0 else 1
        a.lds("ds_read_b128 %s, v%d" % (ar(4 * g, 4), V_XCUR + s), tag)
        for t in range(nt):
            for h in range(2):
                a.lds("ds_read_b64_tr_b16 %s, v%d offset:%d" % (vr(buf + 4 * t + 2 * h, 2), V_WCUR, (16 * s + 4 * h) * 192 + t * 64), tag)
    else:
        for t in range(3):
            for h in range(2):
                a.lds("ds_read_b64_tr_b16 %s, v%d offset:%d" % (vr(buf + 4 * t + 2 * h, 2), V_WCUR, (16 * s + 4 * h) * 192 + t * 32), tag)

def mfma_step(a, g, ch, isV):
    buf = V_WF + 12 * (g % 2)
    if g < 32:
        nt = 2 if ch == 0 else 1
        for t in range(nt):
            acc = vr(V_ACCA + 16 * t, 16)
            cin = "0" if g == 0 else acc
            if isV:
                a.e("v_mfma_f32_32x32x16_bf16 %s, %s, %s, %s" % (acc, ar(4 * g, 4), vr(buf + 4 * t, 4), cin))
            else:
                a.e("v_mfma_f32_32x32x16_bf16 %s, %s, %s, %s" % (acc, vr(buf + 4 * t, 4), ar(4 * g, 4), cin))
    else:
        k = g - 32
        for t in range(3):
            acc = vr(V_ACCB + 16 * t, 16)
            cin = "0" if k == 0 else acc
            a.e("v_mfma_f32_32x32x16_bf16 %s, %s, %s, %s" % (acc, vr(buf + 4 * t, 4), ar(4 * k, 4), cin))

def epilogue_A(a, ch, isV):
    nt = 2 if ch == 0 else 1
    a.e("s_mul_i32 s76, s%d, 3" % S_COLB)
    if ch == 1: a.e("s_add_u32 s76, s76, 2")
    a.e("s_lshl_b32 s77, s%d, 2" % S_ROWB)
    a.e("s_and_b32 s78, s3, 3")
    a.e("s_add_u32 s77, s77, s78")
    a.e("s_lshl_b32 s77, s77, 10")
    for t in range(nt):
        b = V_ACCA + 16 * t
        if t: a.e("s_add_u32 s76, s76, 1")
        a.e("s_lshl_b32 s78, s76, 17")
        a.e("s_add_u32 s78, s78, s77")
        if not isV:
            a.e("s_cmp_lt_u32 s76, 16")
            a.e("s_cselect_b32 s79, 0x%x, 1.0" % f2u(QSCALE))
            for r in range(16):
                a.e("v_mul_f32 v%d, s79, v%d" % (b + r, b + r))
        for r in range(8):
            a.e("v_cvt_pk_bf16_f32 v%d, v%d, v%d" % (b + r, b + 2 * r, b + 2 * r + 1))
        if isV:
            a.vmem("buffer_store_dwordx4 %s, v%d, %s, s78 offen sc1" % (vr(b, 4), V_VST, srd(SRD_WS)), "stA")
            a.vmem("buffer_store_dwordx4 %s, v%d, %s, s78 offen offset:512 sc1" % (vr(b + 4, 4), V_VST, srd(SRD_WS)), "stA")
        else:
            a.vmem("buffer_store_dwordx4 %s, v1, %s, s78 offen sc1" % (vr(b, 4), srd(SRD_WS)), "stA")
            a.e("s_add_u32 s78, s78, 65536")
            a.vmem("buffer_store_dwordx4 %s, v1, %s, s78 offen sc1" % (vr(b + 4, 4), srd(SRD_WS)), "stA")

V_VAD, V_WDR0, V_WDR1, V_WDC0, V_WDC1, V_WDD = 3, 4, 5, 6, 7, 8
V_GQ, V_GO = 10, 11
V_Q, V_KB, V_VB, V_P, V_O, V_S = 12, 16, 24, 40, 48, 64
V_DF = 96
A_ACC, A_H = 0, 32

def kv_setup_and_issue(a, cfg):
    a.e("s_lshl_b32 s76, s%d, 16" % S_HEAD)
    a.e("s_lshl_b32 s77, s%d, 3" % S_QBLK)
    a.e("s_add_u32 s77, s77, s3")
    a.e("s_lshl_b32 s77, s77, 10")
    a.e("s_add_u32 s77, s77, s76")
    a.vmem("buffer_load_dwordx4 %s, v1, %s, s77 offen sc1" % (vr(V_Q, 4), srd(SRD_WS)), "q")
    a.e("s_and_b32 s77, s3, 3")
    a.e("s_lshl_b32 s77, s77, 10")
    a.e("s_lshr_b32 s78, s3, 2")
    a.e("s_lshl_b32 s79, s78, 16")
    a.e("s_add_u32 s%d, s79, s77" % S_KVL)
    a.e("s_lshl_b32 s78, s78, 21")
    a.e("s_add_u32 s78, s78, %d" % WS_K)
    a.e("s_add_u32 s78, s78, s76")
    a.e("s_add_u32 s%d, s78, s77" % S_KVG)
    for s in range(16):
        dma(a, 1, SRD_WS, S_KVG, S_KVL, 4096 * s, "kv%d" % s, sc1=(cfg.kv_mode == "dma_sc1"))
        a.e("s_add_u32 s%d, s%d, 4096" % (S_KVG, S_KVG))

def gelu_epilogue(a):
    T = 44
    a.e("v_mov_b32 v52, 0x%x" % f2u(C1)); a.e("v_mov_b32 v53, 0x%x" % f2u(C1))
    a.e("v_mov_b32 v54, 0x%x" % f2u(C2)); a.e("v_mov_b32 v55, 0x%x" % f2u(C2))
    a.e("v_mov_b32 v56, 1.0"); a.e("v_mov_b32 v57, 1.0")
    a.e("s_lshl_b32 s76, s%d, 2" % S_ROWB)
    a.e("s_and_b32 s77, s3, 3")
    a.e("s_add_u32 s76, s76, s77")
    a.e("s_mul_i32 s76, s76, %d" % HPITCH)
    a.e("s_mul_i32 s77, s%d, 6" % S_COLB)
    a.e("s_min_u32 s77, s77, 80")
    a.e("s_add_u32 s76, s76, s77")
    a.e("s_lshr_b32 s77, s3, 2")
    a.e("s_mul_i32 s77, s77, 3")
    a.e("s_add_u32 s76, s76, s77")
    a.e("s_lshl_b32 s76, s76, 10")
    a.e("s_add_u32 s76, s76, %d" % WS_H)
    for u in range(3):
        b = V_ACCB + 16 * u
        for p in range(4):
            a.e("v_pk_mul_f32 %s, %s, %s" % (vr(T + 2 * p, 2), vr(b + 2 * p, 2), vr(b + 2 * p, 2)))
        for p in range(4):
            a.e("v_pk_fma_f32 %s, %s, v[54:55], v[52:53]" % (vr(T + 2 * p, 2), vr(T + 2 * p, 2)))
        for p in range(4):
            a.e("v_pk_mul_f32 %s, %s, %s" % (vr(T + 2 * p, 2), vr(T + 2 * p, 2), vr(b + 2 * p, 2)))
        for r in range(8):
            a.e("v_exp_f32 v%d, v%d" % (T + r, T + r))
        for p in range(4):
            a.e("v_pk_add_f32 %s, %s, v[56:57]" % (vr(T + 2 * p, 2), vr(T + 2 * p, 2)))
        for r in range(8):
            a.e("v_rcp_f32 v%d, v%d" % (T + r, T + r))
        for p in range(4):
            a.e("v_pk_mul_f32 %s, %s, %s" % (vr(b + 2 * p, 2), vr(b + 2 * p, 2), vr(T + 2 * p, 2)))
        for p in range(4):
            a.e("v_pk_mul_f32 %s, %s, %s" % (vr(b + 2 * p, 2), vr(b + 2 * p, 2), vr(b + 8 + 2 * p, 2)))
        for p in range(4):
            a.e("v_cvt_pk_bf16_f32 v%d, v%d, v%d" % (b + p, b + 2 * p, b + 2 * p + 1))
        a.vmem("buffer_store_dwordx4 %s, v1, %s, s76 offen offset:%d sc1" % (vr(b, 4), srd(SRD_WS), 1024 * u), "stH")

def phase_AB(a, cfg, ch, isV, lab_B):
    for g in range(0, 33):
        i, s = g // 4, g % 4
        if s == 0:
            a.wait(lg="all", vm="c%d" % i)
            a.e("s_barrier")
            if g == 32:
                pass
            if i >= 1:
                issue_chunk(a, i + 4, ch)
        if g < 32:
            reads_step(a, g, ch)
        if g >= 1:
            if g < 32:
                a.wait(lg="r%d" % (g - 1))
            mfma_step(a, g - 1, ch, isV)
    reads_step(a, 32, ch)
    a.e("s_nop 7")
    epilogue_A(a, ch, isV)
    a.e("s_branch %s" % lab_B)

def phase_B(a, cfg, ch):
    for g in range(33, 65):
        i, s = g // 4, g % 4
        if s == 0:
            if i == 10:
                a.wait(lg="all", vm=["c%d" % i, "stA"])
            elif i < 16:
                a.wait(lg="all", vm="c%d" % i)
            else:
                a.wait(lg="all")
            if i == 14:
                poll(a, cfg, 1)
                if cfg.kv_mode == "inv":
                    L = a.newlabel("inv")
                    a.e("s_cmp_lg_u32 s%d, 0" % S_W)
                    a.e("s_cbranch_scc1 %s" % L)
                    a.e("buffer_inv sc1")
                    a.e("s_waitcnt vmcnt(0)")
                    a.label(L)
            a.e("s_barrier")
            if i == 10:
                flag_store(a, 1)
            if i + 4 < 16:
                issue_chunk(a, i + 4, ch)
            if i == 16:
                kv_setup_and_issue(a, cfg)
        if g < 64:
            reads_step(a, g, ch)
            a.wait(lg="r%d" % (g - 1))
        mfma_step(a, g - 1, ch, False)
    a.e("s_nop 7")
    stamp(a, cfg, 2)
    a.e("s_nop 7")
    gelu_epilogue(a)

def phase_G(a, cfg):
    a.e("s_waitcnt vmcnt(0) lgkmcnt(0)")
    a.vm = []; a.lg = []
    a.e("s_barrier")
    flag_store(a, 1)
    Lskip = a.newlabel("gs")
    a.e("s_cmp_ge_u32 s3, 4")
    a.e("s_cbranch_scc1 %s" % Lskip)
    a.e("v_lshrrev_b32 v10, 5, v0")
    a.e("v_lshlrev_b32 v10, 4, v10")
    for grp in range(4):
        for k in range(8):
            a.e("buffer_load_dwordx4 %s, v10, %s, 0 offen offset:%d" % (vr(76 + 4 * k, 4), srd(SRD_GW), (grp * 8 + k) * 32))
        a.e("s_waitcnt vmcnt(0)")
        for k in range(8):
            g = grp * 8 + k
            a.e("v_mfma_f32_32x32x16_bf16 v[44:59], %s, %s, %s" % (vr(76 + 4 * k, 4), ar(4 * g, 4), "0" if g == 0 else "v[44:59]"))
        a.e("s_nop 15")
    a.e("v_mul_f32 v44, 0x%x, v44" % f2u(-math.log2(math.e)))
    a.e("v_exp_f32 v44, v44")
    a.e("s_nop 0")
    a.e("v_add_f32 v44, 1.0, v44")
    a.e("v_rcp_f32 v44, v44")
    a.e("s_lshl_b32 s76, s%d, 2" % S_ROWB)
    a.e("s_add_u32 s76, s76, s3")
    a.e("s_lshl_b32 s76, s76, 7")
    a.e("s_add_u32 s76, s76, %d" % WS_G)
    a.e("v_lshlrev_b32 v10, 2, v0")
    a.e("s_mov_b64 exec, 0xffffffff")
    a.e("buffer_store_dword v44, v10, %s, s76 offen sc1" % srd(SRD_WS))
    a.e("s_mov_b64 exec, -1")
    a.label(Lskip)
    poll(a, cfg, 1)
    if cfg.kv_mode == "inv":
        L = a.newlabel("inv")
        a.e("s_cmp_lg_u32 s%d, 0" % S_W)
        a.e("s_cbranch_scc1 %s" % L)
        a.e("buffer_inv sc1")
        a.label(L)
    a.e("s_waitcnt vmcnt(0)")
    a.e("s_barrier")
    kv_setup_and_issue(a, cfg)
    for k in range(3):
        a.vmem("buffer_load_dword v124, v1, %s, 0 offen" % srd(SRD_GW), "stH")

def wd_slot_base(j):
    return [LDS_R, LDS_R + 16384, LDS_K, LDS_V][j % 4]
WO_BASE = [LDS_K + 16384, LDS_V + 16384, LDS_K + 32768, LDS_V + 32768]

def att_setup(a, cfg):
    a.e("v_lshrrev_b32 v9, 5, v0")
    a.e("v_and_b32 v3, 15, v0")
    a.e("v_lshlrev_b32 v3, 4, v3")
    a.e("v_lshl_add_u32 v3, v9, 8, v3")
    a.e("v_add_u32 v%d, %d, v3" % (V_VAD, LDS_V))
    a.e("v_bfe_u32 v4, v0, 4, 1")
    a.e("v_lshlrev_b32 v5, 2, v4")
    a.e("v_xor_b32 v5, v5, v0")
    a.e("v_and_b32 v5, 7, v5")
    a.e("v_lshrrev_b32 v6, 3, v0")
    a.e("v_lshlrev_b32 v6, 10, v6")
    a.e("v_lshl_add_u32 v%d, v5, 4, v6" % V_WDD)
    a.e("v_bfe_u32 v5, v0, 2, 2")
    a.e("v_lshl_add_u32 v6, v9, 2, v5")
    a.e("v_lshlrev_b32 v6, 7, v6")
    a.e("v_lshl_add_u32 v6, v4, 5, v6")
    a.e("v_and_b32 v7, 3, v0")
    a.e("v_lshl_add_u32 v6, v7, 3, v6")
    a.e("v_lshrrev_b32 v5, 1, v5")
    a.e("v_lshl_add_u32 v6, v5, 6, v6")
    a.e("s_lshr_b32 s76, s3, 1")
    a.e("s_lshl_b32 s77, s76, 12")
    a.e("v_add_u32 v%d, s77, v6" % V_WDR0)
    a.e("v_xor_b32 v%d, 64, v%d" % (V_WDR1, V_WDR0))
    a.e("s_lshl_b32 s77, s3, 14")
    a.e("s_lshl_b32 s78, s%d, 7" % S_OCOL)
    a.e("s_add_u32 s%d, s77, s78" % S_WDG)
    a.e("s_lshl_b32 s%d, s3, 11" % S_WDL)
    a.e("s_and_b32 s77, s3, 1")
    a.e("s_lshl_b32 s78, s%d, 1" % S_OROW)
    a.e("s_add_u32 s77, s77, s78")
    a.e("s_lshl_b32 s76, s76, 1")
    a.e("s_mul_i32 s78, s77, %d" % HPITCH)
    a.e("s_add_u32 s78, s78, s76")
    a.e("s_lshl_b32 s78, s78, 10")
    a.e("s_add_u32 s%d, s78, %d" % (S_HG, WS_H))
    a.e("s_lshl_b32 s78, s77, 5")
    a.e("s_add_u32 s78, s78, s76")
    a.e("s_lshl_b32 s78, s78, 10")
    a.e("s_add_u32 s%d, s78, %d" % (S_OG, WS_O))
    for r in range(16):
        a.e("v_mov_b32 v%d, 0x3f803f80" % (V_VB + r))

def k_read(a, b):
    a.lds("ds_read_b128 %s, v1 offset:%d" % (vr(V_KB + 4 * (b % 2), 4), 1024 * b), "k%d" % b)
def v_read(a, b):
    a.e("s_mov_b64 exec, s[%d:%d]" % (S_VMASK, S_VMASK + 1))
    for g in range(2):
        a.lds("ds_read_b128 %s, v%d offset:%d" % (vr(V_VB + 8 * (b % 2) + 4 * g, 4), V_VAD, 1024 * b + 512 * g), "v%d" % b)
    a.e("s_mov_b64 exec, -1")
def s_mfma(a, b):
    a.e("v_mfma_f32_32x32x16_bf16 %s, %s, %s, 0" % (vr(V_S + 16 * (b % 2), 16), vr(V_KB + 4 * (b % 2), 4), vr(V_Q, 4)))
def pv_mfma(a, b, g):
    cin = "0" if (b == 0 and g == 0) else vr(V_O, 16)
    a.e("v_mfma_f32_32x32x16_bf16 %s, %s, %s, %s" % (vr(V_O, 16), vr(V_VB + 8 * (b % 2) + 4 * g, 4), vr(V_P + 4 * g, 4), cin))

def wd_dma(a, srdr, idx, base, tag):
    a.e("s_add_u32 s76, s%d, %d" % (S_WDG, idx * 8 * 16384))
    dma(a, V_WDD, srdr, 76, S_WDL, base, tag)
    a.e("s_add_u32 s76, s76, 8192")
    dma(a, V_WDD, srdr, 76, S_WDL, base + 1024, tag)

def wd_reads(a, e, ct, dst, tag, areg=False):
    cur = V_WDC0 + ct
    for h in range(2):
        d = ar(dst + 2 * h, 2) if areg else vr(dst + 2 * h, 2)
        a.lds("ds_read_b64_tr_b16 %s, v%d offset:%d" % (d, cur, e * 2048 + h * 1024), tag)

def down_mfma(a, j, e, ct):
    first = (j == 0 and e == 0)
    acc = ar(A_ACC + 16 * ct, 16)
    a.e("v_mfma_f32_32x32x16_bf16 %s, %s, %s, %s" % (acc, vr(V_DF + 4 * (2 * e + ct), 4), ar(A_H + 4 * (2 * j + e), 4), "0" if first else acc))

S_FIRST_DOWN = 6

def attention(a, cfg):
    att_setup(a, cfg)
    a.wait(vm=["q", "kv0", "kv1"])
    a.e("s_barrier")
    stamp(a, cfg, 3)
    k_read(a, 0); k_read(a, 1); v_read(a, 0)
    a.wait(lg="k0")
    s_mfma(a, 0)
    a.e("s_nop 7")
    a.e("s_nop 7")
    for s in range(16):
        j = s - S_FIRST_DOWN
        has_down = 0 <= j <= 10
        if s > 0:
            tags = []
            if s + 1 < 16: tags.append("kv%d" % (s + 1))
            if s == 2: tags.append("stH")
            if has_down: tags += ["wd%d" % j, "h%d" % j]
            if s == 15: tags += ["wd10", "wo0", "wo1", "wo2", "wo3"]
            a.wait(vm=tags)
            if s == 5:
                poll(a, cfg, 2)
            a.e("s_barrier")
            if s == 2:
                flag_store(a, 3)
        if 2 <= s <= 5:
            wd_dma(a, SRD_WD, s - 2, wd_slot_base(s - 2), "wd%d" % (s - 2))
        if 7 <= s <= 13:
            wd_dma(a, SRD_WD, s - 3, wd_slot_base(s - 3), "wd%d" % (s - 3))
        if s in (8, 9): wd_dma(a, SRD_WO, s - 8, WO_BASE[s - 8], "wo%d" % (s - 8))
        if s == 12:
            wd_dma(a, SRD_WO, 2, WO_BASE[2], "wo2"); wd_dma(a, SRD_WO, 3, WO_BASE[3], "wo3")
        if s == 5:
            a.e("s_mov_b32 s76, s%d" % S_HG)
            for jj in range(11):
                if jj == 10:
                    a.e("s_cmp_ge_u32 s3, 6")
                    a.e("s_cselect_b32 s76, 0x%x, s76" % WS_SIZE)
                for e in range(2):
                    a.vmem("buffer_load_dwordx4 %s, v1, %s, s76 offen offset:%d sc1" % (ar(A_H + 4 * (2 * jj + e), 4), srd(SRD_WS), 1024 * e), "h%d" % jj)
                if jj < 10:
                    a.e("s_add_u32 s76, s76, 8192")
            a.e("v_and_b32 v9, 31, v0")
            a.e("v_lshlrev_b32 v9, 2, v9")
            a.e("s_lshl_b32 s76, s%d, 3" % S_QBLK)
            a.e("s_add_u32 s76, s76, s3")
            a.e("s_lshl_b32 s76, s76, 7")
            a.e("s_add_u32 s76, s76, %d" % WS_G)
            a.vmem("buffer_load_dword v%d, v9, %s, s76 offen sc1" % (V_GQ, srd(SRD_WS)), "g")
            a.e("s_lshl_b32 s76, s%d, 1" % S_OROW)
            a.e("s_and_b32 s77, s3, 1")
            a.e("s_add_u32 s76, s76, s77")
            a.e("s_lshl_b32 s76, s76, 7")
            a.e("s_add_u32 s76, s76, %d" % WS_G)
            a.vmem("buffer_load_dword v%d, v9, %s, s76 offen sc1" % (V_GO, srd(SRD_WS)), "g")
        if has_down:
            a.e("v_add_u32 v%d, %d, v%d" % (V_WDC0, wd_slot_base(j), V_WDR0))
            a.e("v_add_u32 v%d, %d, v%d" % (V_WDC1, wd_slot_base(j), V_WDR1))
        for bb in range(4):
            b = 4 * s + bb
            S = V_S + 16 * (b % 2)
            ex = lambda r: a.e("v_exp_f32 v%d, v%d" % (S + r, S + r))
            cv = lambda p: a.e("v_cvt_pk_bf16_f32 v%d, v%d, v%d" % (V_P + p, S + 2 * p, S + 2 * p + 1))
            a.e("s_setprio %d" % (3 - bb))
            ex(0); ex(1)
            if b > 0:
                pv_mfma(a, b - 1, 1)
            if has_down:
                wd_reads(a, bb // 2, bb % 2, V_DF + 4 * bb, "d%d" % b)
            ex(2); ex(3); ex(4); ex(5)
            if b + 1 < 64:
                a.wait(lg="k%d" % (b + 1))
                s_mfma(a, b + 1)
                if b + 2 < 64: k_read(a, b + 2)
                v_read(a, b + 1)
            ex(6); ex(7); ex(8)
            cv(0); cv(1); cv(2); cv(3)
            ex(9); ex(10)
            a.wait(lg="v%d" % b)
            pv_mfma(a, b, 0)
            ex(11); ex(12); ex(13)
            if has_down:
                a.wait(lg="d%d" % b)
                down_mfma(a, j, bb // 2, bb % 2)
            ex(14); ex(15)
            cv(4); cv(5); cv(6); cv(7)
    a.e("s_setprio 0")
    a.e("s_nop 1")
    pv_mfma(a, 63, 1)
    stamp(a, cfg, 4)
    a.wait(vm="g")
    a.e("s_nop 7")
    a.e("s_nop 7")
    a.e("v_mov_b32 v9, 0x%x" % f2u(2.0 ** -40))
    a.e("v_cmp_nge_f32 vcc, v%d, v9" % (V_O + 8))
    a.e("v_mov_b32 v9, 0x%x" % f2u(2.0 ** 40))
    a.e("v_cmp_nle_f32 s[76:77], v%d, v9" % (V_O + 8))
    a.e("v_max3_f32 v9, abs(v%d), abs(v%d), abs(v%d)" % (V_O, V_O + 1, V_O + 2))
    a.e("v_max3_f32 v9, v9, abs(v%d), abs(v%d)" % (V_O + 3, V_O + 4))
    a.e("v_max3_f32 v9, v9, abs(v%d), abs(v%d)" % (V_O + 5, V_O + 6))
    a.e("v_max_f32 v9, v9, abs(v%d)" % (V_O + 7))
    a.e("v_mov_b32 v2, 0x7f000000")
    a.e("v_cmp_nlt_f32 s[78:79], v9, v2")
    a.e("s_nop 1")
    a.e("s_or_b64 vcc, vcc, s[76:77]")
    a.e("s_or_b64 vcc, vcc, s[78:79]")
    if cfg.force_fallback:
        a.e("s_branch L_fallback")
    else:
        a.e("s_cbranch_vccnz L_fallback")
    a.label("L_norm")
    a.e("v_rcp_f32 v9, v%d" % (V_O + 8))
    a.e("s_lshl_b32 s76, s%d, 3" % S_QBLK)
    a.e("s_add_u32 s76, s76, s3")
    a.e("v_mul_f32 v9, v9, v%d" % V_GQ)
    a.e("s_lshl_b32 s76, s76, 5")
    a.e("s_add_u32 s76, s76, s%d" % S_HEAD)
    for r in range(8):
        a.e("v_mul_f32 v%d, v9, v%d" % (V_O + r, V_O + r))
    a.e("s_lshl_b32 s76, s76, 10")
    a.e("s_add_u32 s76, s76, %d" % WS_O)
    for p in range(4):
        a.e("v_cvt_pk_bf16_f32 v%d, v%d, v%d" % (V_O + p, V_O + 2 * p, V_O + 2 * p + 1))
    a.vmem("buffer_store_dwordx4 %s, v1, %s, s76 offen sc1" % (vr(V_O, 4), srd(SRD_WS)), "stO")

def fallback(a, cfg):
    a.label("L_fallback")
    a.e("s_lshl_b32 s76, s%d, 16" % S_HEAD)
    a.e("s_add_u32 s76, s76, %d" % WS_K)
    a.e("s_mov_b32 s77, 0")
    a.e("v_mov_b32 v9, 0xff800000")
    a.label("L_fb1")
    a.e("s_add_u32 s78, s76, s77")
    a.e("buffer_load_dwordx4 %s, v1, %s, s78 offen sc1" % (vr(V_KB, 4), srd(SRD_WS)))
    a.e("s_waitcnt vmcnt(0)")
    a.e("v_mfma_f32_32x32x16_bf16 %s, %s, %s, 0" % (vr(V_S, 16), vr(V_KB, 4), vr(V_Q, 4)))
    a.e("s_nop 15")
    for p in range(8):
        a.e("v_max3_f32 v9, v9, v%d, v%d" % (V_S + 2 * p, V_S + 2 * p + 1))
    a.e("s_add_u32 s77, s77, 1024")
    a.e("s_cmp_lt_u32 s77, 65536")
    a.e("s_cbranch_scc1 L_fb1")
    a.e("v_mov_b32 v2, v9")
    a.e("s_nop 1")
    a.e("v_permlane32_swap_b32 v2, v9")
    a.e("s_nop 1")
    a.e("v_max_f32 v9, v9, v2")
    for r in range(16):
        a.e("v_sub_f32 v%d, 0, v9" % (V_S + 16 + r))
        a.e("v_mov_b32 v%d, 0" % (V_O + r))
    a.e("v_subrev_u32 v2, %d, v%d" % (LDS_V, V_VAD))
    a.e("s_mov_b32 s77, 0")
    a.label("L_fb2")
    a.e("s_add_u32 s78, s76, s77")
    a.e("s_add_u32 s79, s78, %d" % (WS_V - WS_K))
    a.e("buffer_load_dwordx4 %s, v1, %s, s78 offen sc1" % (vr(V_KB, 4), srd(SRD_WS)))
    a.e("s_mov_b64 exec, s[%d:%d]" % (S_VMASK, S_VMASK + 1))
    a.e("buffer_load_dwordx4 %s, v2, %s, s79 offen sc1" % (vr(V_VB, 4), srd(SRD_WS)))
    a.e("buffer_load_dwordx4 %s, v2, %s, s79 offen offset:512 sc1" % (vr(V_VB + 4, 4), srd(SRD_WS)))
    a.e("s_mov_b64 exec, -1")
    a.e("s_waitcnt vmcnt(0)")
    a.e("v_mfma_f32_32x32x16_bf16 %s, %s, %s, %s" % (vr(V_S, 16), vr(V_KB, 4), vr(V_Q, 4), vr(V_S + 16, 16)))
    a.e("s_nop 15")
    for r in range(16):
        a.e("v_exp_f32 v%d, v%d" % (V_S + r, V_S + r))
    a.e("s_nop 0")
    for p in range(8):
        a.e("v_cvt_pk_bf16_f32 v%d, v%d, v%d" % (V_P + p, V_S + 2 * p, V_S + 2 * p + 1))
    a.e("s_nop 1")
    for g in range(2):
        a.e("v_mfma_f32_32x32x16_bf16 %s, %s, %s, %s" % (vr(V_O, 16), vr(V_VB + 4 * g, 4), vr(V_P + 4 * g, 4), vr(V_O, 16)))
    a.e("s_add_u32 s77, s77, 1024")
    a.e("s_cmp_lt_u32 s77, 65536")
    a.e("s_cbranch_scc1 L_fb2")
    a.e("s_nop 15")
    a.e("s_branch L_norm")

V_ACC = 64
V_OF = 16
RED_PITCH = 272
RED_KQ = 64 * RED_PITCH

def phase_E(a, cfg):
    a.e("v_add_u32 v%d, %d, v%d" % (V_WDC0, wd_slot_base(10), V_WDR0))
    a.e("v_add_u32 v%d, %d, v%d" % (V_WDC1, wd_slot_base(10), V_WDR1))
    for q in range(4):
        wd_reads(a, q // 2, q % 2, V_DF + 4 * q, "dl%d" % q)
    a.wait(vm="h10")
    for q in range(4):
        a.wait(lg="dl%d" % q)
        down_mfma(a, 10, q // 2, q % 2)
    for m in range(4):
        a.e("v_add_u32 v%d, %d, v%d" % (V_WDC0, WO_BASE[m], V_WDR0))
        a.e("v_add_u32 v%d, %d, v%d" % (V_WDC1, WO_BASE[m], V_WDR1))
        for e in range(2):
            for ct in range(2):
                wd_reads(a, e, ct, A_H + 4 * ((m * 2 + e) * 2 + ct), "wof", areg=True)
    a.wait(vm="all")
    a.e("s_barrier")
    flag_store(a, 7)
    stamp(a, cfg, 5)
    a.e("v_sub_f32 v9, 1.0, v%d" % V_GO)
    for r in range(32):
        a.e("v_accvgpr_read_b32 v%d, a%d" % (V_ACC + r, A_ACC + r))
    for r in range(32):
        a.e("v_mul_f32 v%d, v9, v%d" % (V_ACC + r, V_ACC + r))
    a.e("v_and_b32 v2, 31, v0")
    a.e("v_mul_u32_u24 v2, %d, v2" % RED_PITCH)
    a.e("v_lshrrev_b32 v3, 5, v0")
    a.e("v_lshl_add_u32 v2, v3, 4, v2")
    a.e("s_and_b32 s76, s3, 1")
    a.e("s_mul_i32 s76, s76, %d" % (32 * RED_PITCH))
    a.e("s_lshr_b32 s77, s3, 1")
    a.e("s_mul_i32 s77, s77, %d" % RED_KQ)
    a.e("s_add_u32 s76, s76, s77")
    a.e("v_add_u32 v2, s76, v2")
    a.e("v_lshrrev_b32 v3, 3, v0")
    a.e("s_lshl_b32 s76, s3, 3")
    a.e("v_add_u32 v3, s76, v3")
    a.e("v_and_b32 v4, 7, v0")
    a.e("v_mul_u32_u24 v5, %d, v3" % RED_PITCH)
    a.e("v_lshl_add_u32 v5, v4, 5, v5")
    a.e("v_lshlrev_b32 v3, 10, v3")
    a.e("v_lshl_add_u32 v3, v4, 4, v3")
    a.wait(lg="all")
    poll(a, cfg, 4, subset=True)
    a.e("s_barrier")
    stamp(a, cfg, 6)
    a.e("s_mov_b32 s76, s%d" % S_OG)
    for m in range(4):
        for e in range(2):
            a.vmem("buffer_load_dwordx4 %s, v1, %s, s76 offen offset:%d sc1" % (vr(V_OF + 4 * (2 * m + e), 4), srd(SRD_WS), 1024 * e), "o%d" % (2 * m + e))
        if m < 3: a.e("s_add_u32 s76, s76, 8192")
    for q in range(8):
        a.wait(vm="o%d" % q)
        for ct in range(2):
            acc = vr(V_ACC + 16 * ct, 16)
            a.e("v_mfma_f32_32x32x16_bf16 %s, %s, %s, %s" % (acc, ar(A_H + 4 * (2 * q + ct), 4), vr(V_OF + 4 * q, 4), acc))
    a.e("s_lshl_b32 s76, s%d, 16" % S_OROW)
    a.e("s_lshl_b32 s77, s%d, 7" % S_OCOL)
    a.e("s_add_u32 s76, s76, s77")
    a.e("s_nop 7")
    a.e("s_nop 1")
    for ct in range(2):
        for q in range(4):
            a.lds("ds_write_b128 v2, %s offset:%d" % (vr(V_ACC + 16 * ct + 4 * q, 4), ct * 128 + q * 32), "rw")
    a.wait(lg="all")
    a.e("s_barrier")
    for kq in range(4):
        for h in range(2):
            a.lds("ds_read_b128 %s, v5 offset:%d" % (vr(16 + 8 * kq + 4 * h, 4), kq * RED_KQ + 16 * h), "rr%d" % kq)
    a.wait(lg="rr1")
    for p in range(4):
        a.e("v_pk_add_f32 %s, %s, %s" % (vr(16 + 2 * p, 2), vr(16 + 2 * p, 2), vr(24 + 2 * p, 2)))
    a.wait(lg="rr3")
    for p in range(4):
        a.e("v_pk_add_f32 %s, %s, %s" % (vr(32 + 2 * p, 2), vr(32 + 2 * p, 2), vr(40 + 2 * p, 2)))
    for p in range(4):
        a.e("v_pk_add_f32 %s, %s, %s" % (vr(16 + 2 * p, 2), vr(16 + 2 * p, 2), vr(32 + 2 * p, 2)))
    for p in range(4):
        a.e("v_cvt_pk_bf16_f32 v%d, v%d, v%d" % (16 + p, 16 + 2 * p, 17 + 2 * p))
    a.vmem("buffer_store_dwordx4 v[16:19], v3, %s, s76 offen" % srd(SRD_OUT), "out")
    if cfg.prof:
        a.wait(vm="all")
        stamp(a, cfg, 7)
        a.e("s_lshl_b32 s76, s2, 3")
        a.e("s_add_u32 s76, s76, s3")
        a.e("s_lshl_b32 s76, s76, 6")
        a.e("s_add_u32 s76, s76, %d" % WS_PROF)
        a.e("v_mov_b32 v2, 0")
        a.e("s_mov_b64 exec, 1")
        for i in range(10):
            a.e("v_mov_b32 v3, s%d" % (S_PROF + 2 * i))
            a.e("buffer_store_dword v3, v2, %s, s76 offen offset:%d" % (srd(SRD_WS), 4 * i))
        a.e("s_waitcnt vmcnt(0)")

def build(cfg):
    a = Asm()
    prologue(a, cfg)
    a.e("s_cmp_ge_u32 s3, 4")
    a.e("s_cbranch_scc1 L_ch1")
    body = {}
    for ch in range(2):
        if ch == 1: a.label("L_ch1")
        a.vm = []; a.lg = []
        for i in range(5):
            issue_chunk(a, i, ch)
        setup2(a, cfg)
        stamp(a, cfg, 1)
        a.e("s_cmp_ge_u32 s%d, %d" % (S_COLB, 11 if ch == 0 else 10))
        a.e("s_cbranch_scc1 L_A%dV" % ch)
        vm0 = list(a.vm)
        for isV in (False, True):
            if isV: a.label("L_A%dV" % ch)
            a.vm = list(vm0); a.lg = []
            phase_AB(a, cfg, ch, isV, "L_B%d" % ch)
        a.label("L_B%d" % ch)
        a.e("s_cmp_eq_u32 s%d, 15" % S_COLB)
        a.e("s_cbranch_scc1 L_G")
        phase_B(a, cfg, ch)
        vm_att = list(a.vm)
        if ch == 0:
            a.e("s_branch L_att")
    a.label("L_att")
    a.vm = list(vm_att); a.lg = []
    attention(a, cfg)
    phase_E(a, cfg)
    a.label("L_end")
    a.e("s_endpgm")
    fallback(a, cfg)
    a.label("L_G")
    phase_G(a, cfg)
    assert a.vm == vm_att, (a.vm, vm_att)
    a.e("s_branch L_att")
    return a.text()

HEADER = open("cdna_kernels/%s.s.ref" % NAME).read().split("; Override")[0]

def full(cfg):
    s = HEADER
    s += "; @launch grid=(256,1,1) block=(512,1,1) lds=163840\n"
    s += '.amdgcn_target "amdgcn-amd-amdhsa--gfx950"\n.text\n.globl %s_kernel\n.p2align 8\n.type %s_kernel,@function\n%s_kernel:\n' % (NAME, NAME, NAME)
    s += build(cfg)
    s += """.section .rodata,"a"
.p2align 6
.amdhsa_kernel %s_kernel
  .amdhsa_next_free_vgpr 256
  .amdhsa_next_free_sgpr 102
  .amdhsa_accum_offset 128
  .amdhsa_group_segment_fixed_size 0
  .amdhsa_kernarg_size 88
  .amdhsa_user_sgpr_count 2
  .amdhsa_user_sgpr_kernarg_segment_ptr 1
  .amdhsa_system_sgpr_workgroup_id_x 1
.end_amdhsa_kernel
""" % NAME
    return s

if __name__ == "__main__":
    cfg = Cfg()
    out = "cdna_kernels/%s.s" % NAME
    for arg in sys.argv[1:]:
        if arg.startswith("out="): out = arg[4:]
        else:
            k, v = arg.split("=")
            cur = getattr(cfg, k)
            setattr(cfg, k, (v == "1") if isinstance(cur, bool) else type(cur)(v))
    open(out, "w").write(full(cfg))
    print("wrote", out)
```
